```python
import torch

def _softmax(x, axis=-1):
    return torch.softmax(x, dim=axis)
def _gelu(x):
    return torch.nn.functional.gelu(x, approximate="tanh")
def _silu(x):
    return torch.nn.functional.silu(x)
def _sigmoid(x):
    return torch.sigmoid(x)
def _layernorm(x, axis=-1, eps=1e-5):
    m = x.mean(dim=axis, keepdim=True)
    v = x.var(dim=axis, keepdim=True, unbiased=False)
    return (x - m) / torch.sqrt(v + eps)
def _scatter_add(tgt, idx, src, axis=0):
    return tgt.clone().index_add_(axis, idx, src)
def _segment_sum(src, seg, n):
    out = torch.zeros((n,) + src.shape[1:], dtype=src.dtype)
    return out.index_add_(0, seg, src)
def _pad(x, pw):
    flat = tuple(v for pair in reversed(pw) for v in pair)
    return torch.nn.functional.pad(x, flat)

kernel_name = 'concat_heads__gqa_block_cached__gqa_block_cached__near_ridge'

def setup_inputs():

    _w = (lambda a: (lambda t: t.to(torch.bfloat16) if t.is_floating_point() else t)(torch.as_tensor(a)))
    def _A_setup():
        B, Sq, D = 16, 32, 1024
        Hq, Hkv, Sk, Dh = 32, 4, 512, 128
        assert Hq % Hkv == 0, (Hq, Hkv)
        return {
            "x": _w((lambda *s: torch.randn(*s, dtype=torch.bfloat16) * 0.8)(B, Sq, D)),
            "k_cache": _w((lambda *s: torch.randn(*s, dtype=torch.bfloat16) * 0.8)(B, Hkv, Sk, Dh)),
            "v_cache": _w((lambda *s: torch.randn(*s, dtype=torch.bfloat16) * 0.05)(B, Hkv, Sk, Dh)),
            "wq": _w((lambda *s: torch.randn(*s, dtype=torch.bfloat16) * 0.8)(D, Hq * Dh) * (D ** -0.5)),
            "wo": _w((lambda *s: torch.randn(*s, dtype=torch.bfloat16) * 0.05)(Hq * Dh, D) * ((Hq * Dh) ** -0.5)),
        }
    _A_in = _A_setup()

    def _B_setup():
        B, Sq, D = 16, 32, 1024
        Hq, Hkv, Sk, Dh = 32, 4, 512, 128
        assert Hq % Hkv == 0, (Hq, Hkv)
        return {
            "x": _w((lambda *s: torch.randn(*s, dtype=torch.bfloat16) * 0.8)(B, Sq, D)),
            "k_cache": _w((lambda *s: torch.randn(*s, dtype=torch.bfloat16) * 0.8)(B, Hkv, Sk, Dh)),
            "v_cache": _w((lambda *s: torch.randn(*s, dtype=torch.bfloat16) * 0.05)(B, Hkv, Sk, Dh)),
            "wq": _w((lambda *s: torch.randn(*s, dtype=torch.bfloat16) * 0.8)(D, Hq * Dh) * (D ** -0.5)),
            "wo": _w((lambda *s: torch.randn(*s, dtype=torch.bfloat16) * 0.05)(Hq * Dh, D) * ((Hq * Dh) ** -0.5)),
        }
    _B_in = _B_setup()

    return {
        "A_x": _A_in["x"],
        "A_k_cache": _A_in["k_cache"],
        "A_v_cache": _A_in["v_cache"],
        "A_wq": _A_in["wq"],
        "A_wo": _A_in["wo"],
        "B_x": _B_in["x"],
        "B_k_cache": _B_in["k_cache"],
        "B_v_cache": _B_in["v_cache"],
        "B_wq": _B_in["wq"],
        "B_wo": _B_in["wo"],
    }

def reference(A_x, A_k_cache, A_v_cache, A_wq, A_wo, B_x, B_k_cache, B_v_cache, B_wq, B_wo):
    def _A_ref(x, k_cache, v_cache, wq, wo):
        B, Sq, D = x.shape
        Hq, Dh = 32, 128
        Hkv = k_cache.shape[1]
        rep = Hq // Hkv
        q = (lambda x, *d: x.permute(*d))((x @ wq).reshape(B, Sq, Hq, Dh), 0, 2, 1, 3)
        k = (lambda x, n, axis: torch.repeat_interleave(x, n, dim=axis))(k_cache, rep, axis=1)
        v = (lambda x, n, axis: torch.repeat_interleave(x, n, dim=axis))(v_cache, rep, axis=1)
        scores = torch.einsum("bhqd,bhkd->bhqk", q, k) * (Dh ** -0.5)
        p = _softmax(scores, axis=-1)
        o = torch.einsum("bhqk,bhkd->bhqd", p, v)
        return (lambda x, *d: x.permute(*d))(o, 0, 2, 1, 3).reshape(B, Sq, Hq * Dh) @ wo

    def _B_ref(x, k_cache, v_cache, wq, wo):
        B, Sq, D = x.shape
        Hq, Dh = 32, 128
        Hkv = k_cache.shape[1]
        rep = Hq // Hkv
        q = (lambda x, *d: x.permute(*d))((x @ wq).reshape(B, Sq, Hq, Dh), 0, 2, 1, 3)
        k = (lambda x, n, axis: torch.repeat_interleave(x, n, dim=axis))(k_cache, rep, axis=1)
        v = (lambda x, n, axis: torch.repeat_interleave(x, n, dim=axis))(v_cache, rep, axis=1)
        scores = torch.einsum("bhqd,bhkd->bhqk", q, k) * (Dh ** -0.5)
        p = _softmax(scores, axis=-1)
        o = torch.einsum("bhqk,bhkd->bhqd", p, v)
        return (lambda x, *d: x.permute(*d))(o, 0, 2, 1, 3).reshape(B, Sq, Hq * Dh) @ wo

    a = _A_ref(A_x, A_k_cache, A_v_cache, A_wq, A_wo)
    b = _B_ref(B_x, B_k_cache, B_v_cache, B_wq, B_wo)
    return torch.concatenate([a, b], axis=-1)
```

```python
NAME = 'concat_heads__gqa_block_cached__gqa_block_cached__near_ridge'

class Asm:
    def __init__(self):
        self.lines = []
        self._lab = 0
    def __call__(self, s, comment=None):
        for ln in s.strip('\n').split('\n'):
            ln = ln.strip()
            if not ln:
                continue
            if ln.endswith(':'):
                self.lines.append(ln)
            else:
                self.lines.append('    ' + ln + (('    ; ' + comment) if comment else ''))
    def c(self, s):
        self.lines.append('    ; ' + s)
    def label(self, base='L'):
        self._lab += 1
        return '%s_%d' % (base, self._lab)
    def text(self):
        return '\n'.join(self.lines) + '\n'

def vr(a, n=1):
    return 'v%d' % a if n == 1 else 'v[%d:%d]' % (a, a + n - 1)
def ar(a, n=1):
    return 'a%d' % a if n == 1 else 'a[%d:%d]' % (a, a + n - 1)
def sr(a, n=1):
    return 's%d' % a if n == 1 else 's[%d:%d]' % (a, a + n - 1)

HEADER = """; Kernarg layout for this problem (104 bytes, ptrs only, base s[0:1]):
"""

def kernel_text(name, body, vgpr, sgpr=102, accum=None):
    if accum is None:
        accum = (vgpr + 3) // 4 * 4
    t = '.text\n.globl %s\n.p2align 8\n.type %s,@function\n%s:\n' % (name, name, name)
    t += body
    t += '.section .rodata,"a"\n.p2align 6\n.amdhsa_kernel %s\n' % name
    t += '  .amdhsa_next_free_vgpr %d\n  .amdhsa_next_free_sgpr %d\n  .amdhsa_accum_offset %d\n' % (vgpr, sgpr, accum)
    t += '  .amdhsa_group_segment_fixed_size 0\n  .amdhsa_kernarg_size 104\n  .amdhsa_user_sgpr_count 2\n'
    t += '  .amdhsa_user_sgpr_kernarg_segment_ptr 1\n  .amdhsa_system_sgpr_workgroup_id_x 1\n.end_amdhsa_kernel\n'
    return t

def file_text(launches, kernels):
    t = HEADER
    for k, g, b, l in launches:
        t += '; @launch kernel=%s grid=(%d,1,1) block=(%d,1,1) lds=%d\n' % (k, g, b, l)
    t += '.amdgcn_target "amdgcn-amd-amdhsa--gfx950"\n'
    t += ''.join(kernels)
    return t
```

```python
import re

def regs_of(tok):
    tok = tok.strip()
    tok = tok.lstrip('-')
    m = re.fullmatch(r'abs\((.*)\)', tok)
    if m: tok = m.group(1)
    m = re.fullmatch(r'([vas])(\d+)', tok)
    if m: return {(m.group(1), int(m.group(2)))}
    m = re.fullmatch(r'([vas])\[(\d+):(\d+)\]', tok)
    if m: return {(m.group(1), i) for i in range(int(m.group(2)), int(m.group(3)) + 1)}
    if tok == 'vcc': return {('s', 'vcc')}
    if tok == 'm0': return {('s', 'm0')}
    if tok == 'exec': return {('s', 'exec')}
    return set()

TRANS = ('v_exp_f32', 'v_log_f32', 'v_rcp_f32', 'v_rsq_f32', 'v_sqrt_f32')

class Ins:
    def __init__(self, text):
        self.text = text
        t = text.split(';')[0].strip()
        parts = t.split(None, 1)
        self.op = parts[0]
        rest = parts[1] if len(parts) > 1 else ''
        ops = [o.strip() for o in re.split(r',(?![^\[]*\])', rest)] if rest else []
        toks = []
        for o in ops:
            toks.append(o.split()[0] if o.split() else o)
        self.mods = rest
        self.toks = toks
        op = self.op
        self.is_mfma = op.startswith('v_mfma')
        self.is_valu = op.startswith('v_') and not self.is_mfma
        self.is_trans = op.replace('_e32', '').replace('_e64', '') in TRANS
        self.is_ds = op.startswith('ds_')
        self.is_vmem = op.startswith('buffer_') or op.startswith('global_')
        self.is_salu = op.startswith('s_')
        self.w = set(); self.r = set()
        self.srcc = set(); self.srcab = set()
        R = [regs_of(x) for x in toks]
        if self.is_mfma:
            self.w = R[0]; self.srcab = R[1] | R[2]; self.srcc = R[3]; self.r = self.srcab | self.srcc
        elif self.is_valu:
            if op.startswith('v_cmp'):
                self.w = R[0]; self.r = set().union(*R[1:])
            elif op.startswith('v_permlane') and 'swap' in op:
                self.w = R[0] | R[1]; self.r = R[0] | R[1]
            elif op.startswith('v_fmac') or op.startswith('v_writelane'):
                self.w = R[0]; self.r = set().union(*R)
            elif '_co_' in op:
                self.w = R[0] | R[1]; self.r = set().union(*R[2:])
            else:
                self.w = R[0]; self.r = set().union(*R[1:]) if len(R) > 1 else set()
        elif self.is_ds:
            if op.startswith('ds_read') or op.startswith('ds_bpermute') or op.startswith('ds_swizzle'):
                self.w = R[0]; self.r = set().union(*R[1:])
            else:
                self.r = set().union(*R)
        elif self.is_vmem:
            if 'load' in op:
                if ' lds' in (' ' + self.mods + ' ').replace(',', ' ') and self.mods.rstrip().endswith('lds'):
                    self.r = set().union(*R) | {('s', 'm0')}; self.dma = True
                else:
                    self.w = R[0]; self.r = set().union(*R[1:])
            elif 'store' in op or 'atomic' in op:
                self.r = set().union(*R); self.sdata = R[0]
        elif self.is_salu:
            if op.startswith('s_cmp') or op.startswith('s_cbranch') or op in ('s_waitcnt', 's_barrier', 's_nop', 's_branch', 's_endpgm', 's_setprio', 's_sleep'):
                self.r = set().union(*R) if R else set()
                if 'vcc' in op: self.r = {('s', 'vcc')}
            else:
                self.w = R[0] if R else set(); self.r = set().union(*R[1:]) if len(R) > 1 else set()
        self.states = 1
        if op == 's_nop':
            self.states = int(toks[0], 0) + 1

def check(lines, name=''):
    ins = [Ins(l) for l in lines if l.strip() and not l.strip().startswith(';') and not l.strip().endswith(':') and not l.strip().startswith('.')]
    errs = []
    n = len(ins)
    for i, p in enumerate(ins):
        dist = 0
        for j in range(i + 1, min(n, i + 24)):
            c = ins[j]
            need = 0; why = ''
            def req(k, w):
                nonlocal need, why
                if k > need: need, why = k, w
            vw = {r for r in p.w if r[0] in 'va'}
            sw = {r for r in p.w if r[0] == 's'}
            if p.is_mfma:
                passes = 8 if '32x32' in p.op else 4
                big = 12 if passes == 8 else 8
                if c.is_mfma:
                    if c.srcab & vw: req(big, 'mfma D -> mfma A/B')
                    if c.srcc & vw and c.srcc != vw: req(10 if passes == 8 else 6, 'mfma D -> mfma C overlap')
                    if (c.w & vw) and not (c.srcc == vw): req(big, 'mfma D WAW mfma (conservative)')
                else:
                    if (c.r | c.w) & vw: req(big, 'mfma D -> other')
                if c.is_valu and (c.w & p.srcc) and not (c.w & vw): req(7 if passes == 8 else 3, 'mfma C WAR valu')
            if p.is_valu:
                if c.is_mfma and (c.r & vw): req(2, 'valu -> mfma')
                if p.is_trans and c.is_valu and not c.is_trans and (c.r & vw): req(1, 'trans -> valu')
                if p.is_trans and (c.is_ds or c.is_vmem or c.is_mfma) and (c.r & vw): req(1, 'trans -> nonvalu(conservative)')
                if c.op.startswith('v_permlane') and (c.r & vw): req(2, 'valu -> permlane')
                if (c.op.startswith('v_readfirstlane') or c.op.startswith('v_readlane')) and (c.r & vw): req(1, 'valu -> readlane')
                if 'dpp' in c.op and (c.r & vw): req(2, 'valu->dpp')
                if sw:
                    if c.is_vmem and (c.r & sw): req(5, 'valu sgpr -> vmem')
                    if c.is_valu and (c.r & sw): req(2, 'valu sgpr -> valu')
                    if c.op.startswith('s_cbranch_vcc') and (c.r & sw): req(0, '')
            if p.is_salu and ('s', 'm0') in p.w and getattr(c, 'dma', False): req(1, 'm0 -> dma')
            if p.is_vmem and hasattr(p, 'sdata') and len(p.sdata) >= 3:
                if c.w & p.sdata: req(2 if c.is_valu else 1, 'store data WAR')
            if need > dist:
                errs.append('%s: need %d have %d (%s):\n    %s\n    %s' % (name, need, dist, why, p.text.strip(), c.text.strip()))
            dist += c.states
    return errs
```

```python
import sys, math, struct
from gen import *
import hazard

def f32bits(x):
    return struct.unpack('<I', struct.pack('<f', x))[0]

MFMA = 'v_mfma_f32_32x32x16_bf16'

class VmSim:
    def __init__(self):
        self.ops = []
    def issue(self, tag, n=1):
        self.ops += [tag] * n
    def need(self, tags):
        last = -1
        for i, t in enumerate(self.ops):
            if t in tags: last = i
        for t in tags:
            assert t in self.ops, t
        return len(self.ops) - 1 - last

def interleave(a, mfmas, fillers):
    assert len(fillers) == len(mfmas)
    for m, f in zip(mfmas, fillers):
        a(m)
        for x in f: a(x)

def spread(valu, gaps, base_cost):
    tot = sum(c for _, c in valu) + sum(base_cost[g] for g in gaps)
    per = tot / len(gaps)
    out = {g: [] for g in gaps}
    acc = 0.0; k = 0
    for gi, g in enumerate(gaps):
        acc += base_cost[g]
        target = per * (gi + 1)
        while k < len(valu) and (acc + valu[k][1] * 0.5 <= target or gi == len(gaps) - 1):
            out[g].append(valu[k][0]); acc += valu[k][1]; k += 1
    assert k == len(valu)
    return out

def gen_k1(P):
    nt = P.get('nt', ' nt')
    a = Asm()
    vLANE = 1
    vWQ, vX, vK, vV = 4, 8, 10, 14
    vTRW, vTRV, vXR, vKR = 18, 20, 22, 26
    vT = 30
    SB = lambda par, j: 48 + 32 * par + 16 * j
    ACC = lambda t, i: 48 + 16 * (2 * t + i)
    NEGM = lambda j: 112 + 16 * j
    PB = lambda par, j, u: 144 + 16 * par + 8 * j + 4 * u
    FR = lambda st, f: 176 + 32 * st + 4 * f
    vPT = 240
    vL, vTS = 252, 254
    OA = lambda j, T: (j * 4 + T) * 16
    QA = lambda j, s: 128 + (8 * j + s) * 4
    sWQ, sX, sK, sV, sWS = 8, 12, 16, 20, 24
    sW, sG, sHP, sP, sBR = 5, 6, 7, 28, 29
    sCOL, sXB, sKVB, sRING = 30, 31, 48, 49
    sKAP, sOFW, sOFX, sM0, sCNT = 50, 51, 52, 53, 54
    sTK, sTV, sOFK, sOFV, sTHR, sXM0, sOOB = 55, 56, 57, 58, 59, 62, 63
    sLINK = 60
    XBASE = 131072
    vm = VmSim()

    a('s_cmp_ge_u32 s2, 256')
    a('s_cbranch_scc1 K1_end')
    a('s_load_dwordx8 s[32:39], s[0:1], 0')
    a('s_load_dwordx8 s[40:47], s[0:1], 40')
    a('s_load_dwordx2 s[24:25], s[0:1], 96')
    if P.get('stamp'):
        a('s_memrealtime s[70:71]')
    a('v_lshrrev_b32 v2, 6, v0')
    a('v_and_b32 v1, 63, v0')
    a('v_readfirstlane_b32 s%d, v2' % sW)
    a('s_and_b32 s3, s2, 7')
    a('s_lshr_b32 s4, s2, 3')
    a('s_lshr_b32 s%d, s3, 2' % sBR)
    a('s_and_b32 s%d, s3, 3' % sG)
    a('s_and_b32 s%d, s4, 3' % sHP)
    a('s_lshr_b32 s%d, s4, 2' % sP)
    a('v_lshrrev_b32 v30, 3, v1')
    a('v_and_b32 v31, 7, v1')
    a('v_lshrrev_b32 v32, 4, v1')
    a('v_and_b32 v33, 1, v32')
    a('v_lshlrev_b32 v33, 2, v33')
    a('v_xor_b32 v33, v31, v33')
    a('v_lshlrev_b32 v33, 4, v33')
    a('v_xor_b32 v34, v31, v32')
    a('v_lshlrev_b32 v34, 4, v34')
    a('v_xor_b32 v35, 64, v34')
    a('v_lshl_add_u32 v%d, v30, 13, v33' % vWQ)
    for i in range(1, 4):
        a('v_add_u32 v%d, %d, v%d' % (vWQ + i, i * (65536 - 1024), vWQ))
    a('s_lshl_b32 s3, s%d, 15' % sW)
    a('v_lshl_add_u32 v%d, v30, 11, v34' % vX)
    a('v_lshl_add_u32 v%d, v30, 11, v35' % (vX + 1))
    a('v_add_u32 v%d, s3, v%d' % (vX, vX))
    a('v_add_u32 v%d, s3, v%d' % (vX + 1, vX + 1))
    a('v_add_u32 v%d, %d, v%d' % (vX + 1, 8 * 2048 - 1024, vX + 1))
    a('s_lshl_b32 s%d, s%d, 11' % (sCOL, sG))
    a('s_lshl_b32 s3, s%d, 9' % sHP)
    a('s_add_u32 s%d, s%d, s3' % (sCOL, sCOL))
    a('s_lshl_b32 s3, s%d, 7' % sW)
    a('s_add_u32 s%d, s%d, s3' % (sCOL, sCOL))
    a('s_lshl_b32 s%d, s%d, 17' % (sXB, sP))
    a('s_lshl_b32 s%d, s%d, 15' % (sRING, sW))
    a('s_lshl_b32 s3, s%d, 11' % sW)
    a('s_add_u32 s%d, s3, %d' % (sXM0, XBASE))
    a('s_lshl_b32 s3, s%d, 1' % sP)
    a('s_lshl_b32 s4, s%d, 2' % sHP)
    a('s_add_u32 s3, s3, s4')
    a('s_and_b32 s%d, s3, %d' % (sKAP, 15 if P.get('rot', 1) else 0))
    a('s_waitcnt lgkmcnt(0)')
    a('s_cmp_eq_u32 s%d, 0' % sBR)
    a('s_cselect_b64 s[%d:%d], s[32:33], s[40:41]' % (sX, sX + 1))
    a('s_cselect_b64 s[%d:%d], s[34:35], s[42:43]' % (sK, sK + 1))
    a('s_cselect_b64 s[%d:%d], s[36:37], s[44:45]' % (sV, sV + 1))
    a('s_cselect_b64 s[%d:%d], s[38:39], s[46:47]' % (sWQ, sWQ + 1))
    a('s_mov_b32 s%d, %d' % (sX + 2, 1 << 20))
    a('s_mov_b32 s%d, 0x20000' % (sX + 3))
    a('s_mov_b32 s%d, %d' % (sWQ + 2, 8 << 20))
    a('s_mov_b32 s%d, 0x20000' % (sWQ + 3))

    def next_chunk():
        return ['s_lshl_b32 s%d, s%d, 19' % (sOFW, sKAP),
                's_lshl_b32 s%d, s%d, 7' % (sOFX, sKAP),
                's_add_u32 s%d, s%d, s%d' % (sOFW, sOFW, sCOL),
                's_add_u32 s%d, s%d, s%d' % (sOFX, sOFX, sXB),
                's_add_u32 s%d, s%d, 1' % (sKAP, sKAP),
                's_and_b32 s%d, s%d, 15' % (sKAP, sKAP)]
    def set_m0(sbase, off):
        return ['s_add_u32 m0, s%d, %d' % (sbase, off)]
    def dma(vo, srd, soff, i):
        return 'buffer_load_dwordx4 v%d, s[%d:%d], s%d offen offset:%d%s lds' % (vo + i, srd, srd + 3, soff, i * 1024, nt)

    for tau in range(4):
        for x in next_chunk(): a(x)
        for x in set_m0(sXM0, tau * 8192): a(x)
        a('s_nop 0')
        for i in range(2): a(dma(vX, sX, sOFX, i))
        vm.issue(('x', tau), 2)
        for h in range(2):
            for x in set_m0(sRING, (2 * tau + h) * 4096): a(x)
            if h == 1: a('s_add_u32 s%d, s%d, %d' % (sOFW, sOFW, 32 * 8192))
            else: a('s_nop 0')
            for i in range(4): a(dma(vWQ, sWQ, sOFW, i))
            vm.issue(('it', 2 * tau + h), 4)

    a('s_mov_b32 s%d, %d' % (sK + 2, 8 << 20))
    a('s_mov_b32 s%d, 0x20000' % (sK + 3))
    a('s_mov_b32 s%d, %d' % (sV + 2, 8 << 20))
    a('s_mov_b32 s%d, 0x20000' % (sV + 3))
    a('s_mov_b32 s%d, %d' % (sWS + 2, 16 << 20))
    a('s_mov_b32 s%d, 0x20000' % (sWS + 3))
    a('v_lshl_add_u32 v%d, v30, 8, v34' % vK)
    a('v_lshl_add_u32 v%d, v30, 8, v35' % (vK + 1))
    a('v_add_u32 v%d, 1024, v%d' % (vK + 1, vK + 1))
    a('v_add_u32 v%d, 2048, v%d' % (vK + 2, vK))
    a('v_add_u32 v%d, 2048, v%d' % (vK + 3, vK + 1))
    a('v_lshl_add_u32 v%d, v30, 8, v33' % vV)
    for i in range(1, 4):
        a('v_add_u32 v%d, %d, v%d' % (vV + i, i * 1024, vV))
    a('s_lshl_b32 s%d, s%d, 20' % (sKVB, sP))
    a('s_lshr_b32 s3, s%d, 1' % sW)
    a('s_lshl_b32 s3, s3, 19')
    a('s_add_u32 s%d, s%d, s3' % (sKVB, sKVB))
    a('s_lshl_b32 s3, s%d, 17' % sG)
    a('s_add_u32 s%d, s%d, s3' % (sKVB, sKVB))
    a('s_and_b32 s3, s%d, 1' % sW)
    a('s_lshl_b32 s3, s3, 16')
    a('s_add_u32 s%d, s%d, s3' % (sKVB, sKVB))
    a('s_lshl_b32 s%d, s%d, 1' % (sTK, sHP))
    if not P.get('rot', 1): a('s_mov_b32 s%d, 0' % sTK)
    a('s_mov_b32 s%d, s%d' % (sTV, sTK))
    a('s_mov_b32 s%d, 0x%x' % (sTHR, f32bits(1024.0)))
    a('s_mov_b32 s%d, 0' % sOOB)
    a('v_lshrrev_b32 v36, 5, v1')
    a('v_bfe_u32 v37, v1, 2, 2')
    a('v_bfe_u32 v38, v1, 4, 1')
    a('v_and_b32 v39, 1, v1')
    a('v_bfe_u32 v40, v1, 1, 1')
    a('v_lshl_add_u32 v39, v38, 1, v39')
    a('v_bfe_u32 v41, v1, 3, 1')
    a('v_lshlrev_b32 v41, 2, v41')
    a('v_xor_b32 v39, v39, v41')
    a('v_lshlrev_b32 v39, 4, v39')
    a('v_lshl_add_u32 v39, v40, 3, v39')
    a('v_lshl_add_u32 v39, v37, 7, v39')
    a('v_add_u32 v39, s%d, v39' % sRING)
    a('v_lshl_add_u32 v%d, v36, 10, v39' % vTRW)
    a('v_lshl_add_u32 v%d, v36, 9, v39' % vTRV)
    a('v_xor_b32 v%d, 64, v%d' % (vTRW + 1, vTRW))
    a('v_xor_b32 v%d, 64, v%d' % (vTRV + 1, vTRV))
    a('v_and_b32 v42, 31, v1')
    a('v_bfe_u32 v43, v1, 1, 3')
    a('v_xor_b32 v43, v43, v36')
    a('v_lshlrev_b32 v43, 4, v43')
    a('v_lshl_add_u32 v43, v42, 7, v43')
    for u in range(4):
        a('v_xor_b32 v44, %d, v43' % (32 * u))
        a('v_add_u32 v%d, %d, v44' % (vXR + u, XBASE))
        a('v_add_u32 v%d, s%d, v44' % (vKR + u, sRING))
    for i in range(4): a('v_mov_b32 v%d, 0' % (vPT + i))
    a('v_mov_b32 v%d, 0' % vL)
    a('v_mov_b32 v%d, 0' % (vL + 1))
    for i in range(4):
        a('%s %s, %s, %s, 0' % (MFMA, vr(48 + 16 * i, 16), vr(vPT, 4), vr(vPT, 4)))
    for i in range(8):
        a('%s %s, %s, %s, 0' % (MFMA, ar(16 * i, 16), vr(vPT, 4), vr(vPT, 4)))

    def q_reads(n):
        st = n % 2; slot = n % 8; xs = (n // 2) % 4; ub = 2 * (n % 2)
        g = []
        for up in range(2):
            for k in range(2):
                grp = []
                grp.append('ds_read_b128 %s, v%d offset:%d' % (vr(FR(st, 4 + 2 * up + k), 4), vXR + ub + up, xs * 8192 + k * 4096))
                for r2 in range(2):
                    grp.append('ds_read_b64_tr_b16 %s, v%d offset:%d' % (vr(FR(st, 2 * up + k) + 2 * r2, 2), vTRW + k, slot * 4096 + (16 * up + 4 * r2) * 128))
                g.append(grp)
        return g
    def q_mfmas(n):
        st = n % 2
        return ['%s %s, %s, %s, %s' % (MFMA, vr(ACC(t, i), 16), vr(FR(st, 2 * up + t), 4), vr(FR(st, 4 + 2 * up + i), 4), vr(ACC(t, i), 16))
                for up in range(2) for t in range(2) for i in range(2)]

    stream = [('K', 0, 0), ('K', 0, 1), ('K', 1, 0), ('K', 1, 1)]
    for i in range(8):
        stream += [('V', i, 0), ('V', i, 1), ('K', i + 2, 0), ('K', i + 2, 1)]
    def kv_issue(ai):
        kind, t, dh = stream[ai]
        slot = ai % 8
        sT, sOF, vo, srd = (sTK, sOFK, vK, sK) if kind == 'K' else (sTV, sOFV, vV, sV)
        pre = []
        if dh == 0:
            pre += ['s_lshl_b32 s%d, s%d, 13' % (sOF, sT),
                    's_add_u32 s%d, s%d, 1' % (sT, sT),
                    's_add_u32 s%d, s%d, s%d' % (sOF, sOF, sKVB),
                    's_and_b32 s%d, s%d, 7' % (sT, sT)]
            if kind == 'K': pre += ['s_or_b32 s%d, s%d, s%d' % (sOF, sOF, sOOB)]
        else:
            pre += ['s_add_u32 s%d, s%d, 128' % (sOF, sOF)]
        pre += set_m0(sRING, slot * 4096)
        return pre, [dma(vo, srd, sOF, i) for i in range(4)]

    def q_step_sim(n):
        need = []
        if n + 1 <= 31:
            need.append(('it', n + 1))
            if n % 2 == 1: need.append(('x', (n + 1) // 2))
        N = vm.need(need) if need else None
        if n % 2 == 1 and (n - 1) // 2 + 4 <= 15: vm.issue(('x', (n - 1) // 2 + 4), 2)
        vm.issue(('it', n + 8), 4)
        return N
    N0 = vm.need([('x', 0), ('it', 0)])
    NQ = [q_step_sim(n) for n in range(32)]
    NQloop = [min(NQ[n], NQ[n + 8], NQ[n + 16]) for n in range(8)]

    def q_step(n, N, peeled):
        w = 's_waitcnt lgkmcnt(0)' if N is None else 's_waitcnt vmcnt(%d) lgkmcnt(0)' % N
        a(w)
        if n % 2 == 1 and n < 31: a('s_barrier')
        fill = [[] for _ in range(8)]
        if n < 31:
            for gi, grp in enumerate(q_reads(n + 1)): fill[gi] += grp
        if not peeled:
            if n % 2 == 0:
                nc = next_chunk()
                fill[0] += nc[:2]; fill[1] += nc[2:4]; fill[2] += nc[4:]
                fill[3] += set_m0(sRING, (n % 8) * 4096)
                for i in range(4): fill[4 + i].append(dma(vWQ, sWQ, sOFW, i))
            else:
                fill[0] += set_m0(sXM0, (((n - 1) // 2) % 4) * 8192)
                fill[0] += ['s_add_u32 s%d, s%d, %d' % (sOFW, sOFW, 32 * 8192)]
                fill[1].append(dma(vX, sX, sOFX, 0))
                fill[2].append(dma(vX, sX, sOFX, 1))
                fill[3] += set_m0(sRING, (n % 8) * 4096)
                for i in range(4): fill[4 + i].append(dma(vWQ, sWQ, sOFW, i))
        else:
            pre, d = kv_issue(n + 8 - 32)
            for k, x in enumerate(pre): fill[min(3, k // 2)].append(x)
            for i in range(4): fill[4 + i].append(d[i])
        interleave(a, q_mfmas(n), fill)

    a('s_waitcnt vmcnt(%d)' % N0)
    a('s_barrier')
    for grp in q_reads(0):
        for x in grp: a(x)
    a('s_mov_b32 s%d, 3' % sCNT)
    a('.p2align 3')
    a('K1_qloop:')
    for n in range(8): q_step(n, NQloop[n], False)
    a('s_sub_u32 s%d, s%d, 1' % (sCNT, sCNT))
    a('s_cmp_lg_u32 s%d, 0' % sCNT)
    a('s_cbranch_scc1 K1_qloop')
    for n in range(24, 32): q_step(n, NQ[n], True)

    a('s_barrier')
    c = math.log2(math.e) / math.sqrt(128.0)
    a('s_mov_b32 s3, 0x%x' % f32bits(c))
    a('s_lshl_b32 s4, s%d, 12' % sW)
    a('s_add_u32 s4, s4, %d' % XBASE)
    a('v_lshlrev_b32 v30, 4, v1')
    a('v_add_u32 v31, s4, v30')
    a('s_lshl_b32 s4, s%d, 13' % sW)
    a('s_add_u32 s4, s4, %d' % XBASE)
    a('v_add_u32 v32, s4, v30')
    a('v_xor_b32 v33, 8192, v32')
    a('s_nop 4')
    for t in range(2):
        for i in range(2):
            b = ACC(t, i)
            for r in range(16): a('v_mul_f32 v%d, s3, v%d' % (b + r, b + r))
            for r in range(8): a('v_cvt_pk_bf16_f32 v%d, v%d, v%d' % (b + r, b + 2 * r, b + 2 * r + 1))
            for hf in range(2):
                a('ds_write_b128 v31, %s offset:%d' % (vr(b + 4 * hf, 4), (i * 16 + 2 * t + hf) * 1024))
    a('s_waitcnt lgkmcnt(0)')
    a('s_barrier')

    def a_reads(ai, st):
        kind, t, dh = stream[ai]
        slot = ai % 8
        if kind == 'K':
            return [['ds_read_b128 %s, v%d offset:%d' % (vr(FR(st, u), 4), vKR + u, slot * 4096)] for u in range(4)]
        g = []
        for u in range(2):
            for Tp in range(2):
                g.append(['ds_read_b64_tr_b16 %s, v%d offset:%d' % (vr(FR(st, 2 * u + Tp) + 2 * r2, 2), vTRV + Tp, slot * 4096 + (16 * u + 8 * r2) * 128) for r2 in range(2)])
        return g
    def a_mfmas(ai, st, czero=False):
        kind, t, dh = stream[ai]
        par = t % 2
        out = []
        if kind == 'K':
            for u in range(4):
                for j in range(2):
                    c = vr(SB(par, j), 16)
                    if dh == 0 and u == 0: c = '0' if czero else vr(NEGM(j), 16)
                    out.append('%s %s, %s, %s, %s' % (MFMA, vr(SB(par, j), 16), vr(FR(st, u), 4), ar(QA(j, 4 * dh + u), 4), c))
        else:
            for u in range(2):
                for Tp in range(2):
                    for j in range(2):
                        T = 2 * dh + Tp
                        out.append('%s %s, %s, %s, %s' % (MFMA, ar(OA(j, T), 16), vr(FR(st, 2 * u + Tp), 4), vr(PB(par, j, u), 4), ar(OA(j, T), 16)))
        return out

    def softmax_ops(par, src_sub=None):
        ops = []
        units = [(j, k) for k in range(8) for j in range(2)]
        pend = None
        for idx, (j, k) in enumerate(units):
            t0 = vPT + (idx % 3) * 2
            s0 = SB(par, j) + 2 * k
            if src_sub is not None:
                ops.append(('v_add_f32 v%d, v%d, v%d' % (s0, NEGM(j), s0), 4))
                ops.append(('v_add_f32 v%d, v%d, v%d' % (s0 + 1, NEGM(j), s0 + 1), 4))
            ops.append(('v_exp_f32 v%d, v%d' % (t0, s0), 8))
            ops.append(('v_exp_f32 v%d, v%d' % (t0 + 1, s0 + 1), 8))
            if pend: ops += pend
            post = []
            if k == 0:
                post.append(('v_add_f32 v%d, v%d, v%d' % (vTS + j, t0, t0 + 1), 4))
            else:
                post.append(('v_add_f32 v%d, v%d, v%d' % (vTS + j, vTS + j, t0), 4))
                post.append(('v_add_f32 v%d, v%d, v%d' % (vTS + j, vTS + j, t0 + 1), 4))
            post.append(('v_cvt_pk_bf16_f32 v%d, v%d, v%d' % (PB(par, j, 0) + k, t0, t0 + 1), 4))
            pend = post
        ops.append(('s_nop 0', 4))
        ops += pend
        return ops

    cons = list(range(30)) + [32, 33]
    NA = []
    NA0 = vm.need([('it', 32)])
    for ci, ai in enumerate(cons):
        nxt = cons[ci + 1] if ci + 1 < len(cons) else None
        NA.append(vm.need([('it', 32 + nxt)]) if nxt is not None else None)
        if ai + 8 <= 35 and ai < 30: vm.issue(('it', 32 + ai + 8), 4)
    NAloop = {4 + k: min(NA[4 + k], NA[12 + k], NA[20 + k]) for k in range(8)}

    def a_steps(cis, Ns, valu=None, first_gap=3, czero=False):
        fills = []
        for ci in cis:
            ai = cons[ci]; st = ci % 2
            fill = [[] for _ in range(8)]
            if ci + 1 < len(cons):
                for gi, grp in enumerate(a_reads(cons[ci + 1], 1 - st)): fill[gi] += grp
            if ai + 8 <= 35 and ai < 30:
                pre, d = kv_issue(ai + 8)
                for k, x in enumerate(pre): fill[min(3, k // 2)].append(x)
                for i in range(4): fill[4 + i].append(d[i])
            fills += fill
        if valu:
            base = [sum(4 if not x.startswith('buffer') else 8 for x in f) for f in fills]
            sp = spread(valu, list(range(first_gap, len(fills))), base)
            for g, l in sp.items(): fills[g] += l
        for k, ci in enumerate(cis):
            N = Ns[ci]
            a('s_waitcnt lgkmcnt(0)' if N is None else 's_waitcnt vmcnt(%d) lgkmcnt(0)' % N)
            interleave(a, a_mfmas(cons[ci], ci % 2, czero), fills[8 * k:8 * k + 8])

    stubs = []
    def check_tile(par):
        lab = a.label('K1_rs'); back = a.label('K1_bk')
        a('v_max_f32 v%d, v%d, v%d' % (vT, vTS, vTS + 1))
        a('v_cmp_lt_f32 vcc, s%d, v%d' % (sTHR, vT))
        a('s_cbranch_vccnz %s' % lab)
        a(back + ':')
        a('v_add_f32 v%d, v%d, v%d' % (vL, vL, vTS))
        a('v_add_f32 v%d, v%d, v%d' % (vL + 1, vL + 1, vTS + 1))
        stubs.append((lab, back, par))

    for s in range(8):
        for j in range(2):
            a('ds_read_b128 %s, v%d offset:%d' % (ar(QA(j, s), 4), 32 + j, s * 1024))
        if s == 3: a('s_waitcnt lgkmcnt(2)')
    a('s_waitcnt vmcnt(%d) lgkmcnt(8)' % NA0)
    for grp in a_reads(0, 0):
        for x in grp: a(x)
    a_steps([0, 1], NA, czero=True)
    a('s_nop 9')
    for k in range(8):
        for j in range(2):
            b = SB(0, j)
            if k == 0: a('v_max3_f32 v%d, v%d, v%d, v%d' % (vT + j, b, b + 1, b + 2))
            elif k < 7: a('v_max3_f32 v%d, v%d, v%d, v%d' % (vT + j, vT + j, b + 2 * k + 1, b + 2 * k + 2))
            else: a('v_max_f32 v%d, v%d, v%d' % (vT + j, vT + j, b + 15))
    a('v_mov_b32 v%d, v%d' % (vT + 2, vT))
    a('v_mov_b32 v%d, v%d' % (vT + 3, vT + 1))
    a('s_nop 1')
    a('v_permlane32_swap_b32 v%d, v%d' % (vT, vT + 2))
    a('v_permlane32_swap_b32 v%d, v%d' % (vT + 1, vT + 3))
    a('v_max_f32 v%d, v%d, v%d' % (vT, vT, vT + 2))
    a('v_max_f32 v%d, v%d, v%d' % (vT + 1, vT + 1, vT + 3))
    for j in range(2):
        for r in range(16): a('v_sub_f32 v%d, 0, v%d' % (NEGM(j) + r, vT + j))
    a_steps([2, 3], NA, valu=softmax_ops(0, src_sub=True), first_gap=0)
    a('v_mov_b32 v%d, v%d' % (vL, vTS))
    a('v_mov_b32 v%d, v%d' % (vL + 1, vTS + 1))
    a('s_mov_b32 s%d, 3' % sCNT)
    a('.p2align 3')
    a('K1_aloop:')
    a('s_cmp_eq_u32 s%d, 1' % sCNT)
    a('s_cselect_b32 s%d, 0x40000000, 0' % sOOB)
    a_steps([4, 5, 6, 7], NAloop, valu=softmax_ops(1))
    check_tile(1)
    a_steps([8, 9, 10, 11], NAloop, valu=softmax_ops(0))
    check_tile(0)
    a('s_sub_u32 s%d, s%d, 1' % (sCNT, sCNT))
    a('s_cmp_lg_u32 s%d, 0' % sCNT)
    a('s_cbranch_scc1 K1_aloop')
    a_steps([28, 29], NA, valu=softmax_ops(1))
    check_tile(1)
    a_steps([30, 31], NA)

    a('v_mov_b32 v%d, v%d' % (vT, vL))
    a('v_mov_b32 v%d, v%d' % (vT + 1, vL + 1))
    a('v_lshlrev_b32 v%d, 4, v1' % (vT + 2))
    a('v_permlane32_swap_b32 v%d, v%d' % (vL, vT))
    a('v_permlane32_swap_b32 v%d, v%d' % (vL + 1, vT + 1))
    a('v_add_f32 v%d, v%d, v%d' % (vL, vL, vT))
    a('v_add_f32 v%d, v%d, v%d' % (vL + 1, vL + 1, vT + 1))
    a('v_add_u32 v%d, s%d, v%d' % (vT + 3, sRING, vT + 2))
    a('v_xor_b32 v%d, 32768, v%d' % (vT + 4, vT + 3))
    a('v_mov_b32 v%d, v%d' % (vT + 6, NEGM(1)))
    a('v_mov_b32 v%d, v%d' % (vT + 7, vL + 1))
    a('s_waitcnt vmcnt(0)')
    a('ds_write_b64 v%d, %s offset:16384' % (vT + 3, vr(vT + 6, 2)))
    a('s_nop 1')
    for k in range(16):
        a('ds_write_b128 v%d, %s offset:%d' % (vT + 3, ar(64 + 4 * k, 4), k * 1024))
    a('s_lshl_b32 s3, s%d, 4' % sBR)
    a('s_lshl_b32 s4, s%d, 1' % sP)
    a('s_add_u32 s3, s3, s4')
    a('s_lshr_b32 s4, s%d, 1' % sW)
    a('s_add_u32 s3, s3, s4')
    a('s_lshl_b32 s3, s3, 18')
    a('s_lshl_b32 s4, s%d, 16' % sG)
    a('s_add_u32 s3, s3, s4')
    a('s_lshl_b32 s4, s%d, 14' % sHP)
    a('s_add_u32 s3, s3, s4')
    a('s_and_b32 s4, s%d, 1' % sW)
    a('s_lshl_b32 s4, s4, 13')
    a('s_add_u32 s3, s3, s4')
    a('s_add_u32 s4, s3, 4096')
    a('s_waitcnt lgkmcnt(0)')
    a('s_barrier')
    a('ds_read_b64 %s, v%d offset:16384' % (vr(vT + 6, 2), vT + 4))
    for k in range(14):
        a('ds_read_b128 %s, v%d offset:%d' % (vr(48 + 4 * k, 4), vT + 4, k * 1024))
    a('s_waitcnt lgkmcnt(13)')
    for k in range(14, 16):
        a('ds_read_b128 %s, v%d offset:%d' % (vr(48 + 4 * k, 4), vT + 4, k * 1024))
    a('v_min_f32 v%d, v%d, v%d' % (vT + 8, NEGM(0), vT + 6))
    a('v_sub_f32 v%d, v%d, v%d' % (vT + 9, vT + 8, NEGM(0)))
    a('v_sub_f32 v%d, v%d, v%d' % (vT + 10, vT + 8, vT + 6))
    a('v_exp_f32 v%d, v%d' % (vT + 9, vT + 9))
    a('v_exp_f32 v%d, v%d' % (vT + 10, vT + 10))
    a('s_nop 0')
    a('v_mul_f32 v%d, v%d, v%d' % (vT + 11, vT + 9, vL))
    a('v_fmac_f32 v%d, v%d, v%d' % (vT + 11, vT + 10, vT + 7))
    a('v_rcp_f32 v%d, v%d' % (vT + 11, vT + 11))
    a('s_nop 0')
    a('v_mul_f32 v%d, v%d, v%d' % (vT + 9, vT + 9, vT + 11))
    a('v_mul_f32 v%d, v%d, v%d' % (vT + 10, vT + 10, vT + 11))
    for s in range(8):
        a('s_waitcnt lgkmcnt(%d)' % max(0, 14 - 2 * s))
        for r in range(8):
            a('v_accvgpr_read_b32 v%d, a%d' % (176 + 8 * s + r, 8 * s + r))
        for r in range(8):
            a('v_mul_f32 v%d, v%d, v%d' % (48 + 8 * s + r, vT + 10, 48 + 8 * s + r))
        for r in range(8):
            a('v_fmac_f32 v%d, v%d, v%d' % (48 + 8 * s + r, vT + 9, 176 + 8 * s + r))
        for r in range(4):
            a('v_cvt_pk_bf16_f32 v%d, v%d, v%d' % (112 + 4 * s + r, 48 + 8 * s + 2 * r, 48 + 8 * s + 2 * r + 1))
        a('buffer_store_dwordx4 %s, v%d, s[%d:%d], s%d offen offset:%d%s' % (vr(112 + 4 * s, 4), vT + 2, sWS, sWS + 3, 3 if s < 4 else 4, (s % 4) * 1024, P.get('ost', '')))
    if P.get('stamp'):
        a('s_waitcnt vmcnt(0)')
        a('s_memrealtime s[72:73]')
        a('s_lshl_b32 s3, s2, 2')
        a('s_add_u32 s3, s3, s%d' % sW)
        a('s_lshl_b32 s3, s3, 4')
        a('s_add_u32 s3, s3, %d' % (12 << 20))
        a('s_waitcnt lgkmcnt(0)')
        for i in range(4): a('v_mov_b32 v%d, s%d' % (48 + i, 70 + i))
        a('v_mov_b32 v52, 0')
        a('buffer_store_dwordx4 v[48:51], v52, s[%d:%d], s3 offen' % (sWS, sWS + 3))
    a('K1_end:')
    a('s_endpgm')
    main_lines = list(a.lines)

    for lab, back, par in stubs:
        a(lab + ':')
        a('s_call_b64 s[%d:%d], K1_rare%d' % (sLINK, sLINK + 1, par))
        a('s_branch %s' % back)
    rare_lines = []
    for par in range(2):
        st = len(a.lines)
        a('K1_rare%d:' % par)
        a('s_nop 15')
        for j in range(2):
            b = SB(par, j)
            a('v_max3_f32 v%d, v%d, v%d, v%d' % (vT, b, b + 1, b + 2))
            for k in range(1, 7): a('v_max3_f32 v%d, v%d, v%d, v%d' % (vT, vT, b + 2 * k + 1, b + 2 * k + 2))
            a('v_max_f32 v%d, v%d, v%d' % (vT, vT, b + 15))
            a('v_mov_b32 v%d, v%d' % (vT + 1, vT))
            a('s_nop 1')
            a('v_permlane32_swap_b32 v%d, v%d' % (vT, vT + 1))
            a('v_max3_f32 v%d, v%d, v%d, 0' % (vT, vT, vT + 1))
            for r in range(16):
                a('v_sub_f32 v%d, v%d, v%d' % (b + r, b + r, vT))
                a('v_sub_f32 v%d, v%d, v%d' % (SB(1 - par, j) + r, SB(1 - par, j) + r, vT))
                a('v_sub_f32 v%d, v%d, v%d' % (NEGM(j) + r, NEGM(j) + r, vT))
            a('v_sub_f32 v%d, 0, v%d' % (vT + 1, vT))
            a('v_exp_f32 v%d, v%d' % (vT + 1, vT + 1))
            a('s_nop 0')
            a('v_mul_f32 v%d, v%d, v%d' % (vL + j, vL + j, vT + 1))
            for r in range(64):
                a('v_accvgpr_read_b32 v%d, a%d' % (vT + 2, 64 * j + r))
                a('v_mul_f32 v%d, v%d, v%d' % (vT + 2, vT + 2, vT + 1))
                a('v_accvgpr_write_b32 a%d, v%d' % (64 * j + r, vT + 2))
        for t, _ in softmax_ops(par): a(t)
        a('s_nop 1')
        a('s_setpc_b64 s[%d:%d]' % (sLINK, sLINK + 1))
        rare_lines.append(a.lines[st:])
    errs = hazard.check(unroll_for_check(main_lines, ['K1_qloop', 'K1_aloop']), 'K1')
    for r in rare_lines: errs += hazard.check(r, 'K1rare')
    for e in errs: print('HAZARD', e, file=sys.stderr)
    return kernel_text('qa_kernel', a.text(), 448, accum=256)

def unroll_for_check(lines, loops):
    out = list(lines)
    for lab in loops:
        i = out.index(lab + ':')
        j = max(k for k, l in enumerate(out) if l.strip().endswith(' ' + lab))
        out = out[:j + 1] + out[i + 1:j + 1] + out[j + 1:]
    return out

def gen_k2(P):
    nt = P.get('nt', ' nt'); ont = P.get('ont', '')
    D = 4
    a = Asm()
    vWO, vO, vTR = 4, 8, 10
    vT = 12
    ACC = lambda t, i: 32 + 16 * (2 * t + i)
    AF = lambda st, f: 96 + 16 * st + 4 * f
    BF = lambda sl, f: 128 + 16 * sl + 4 * f
    sWO, sWS, sOUT = 8, 12, 16
    sW, sBR, sNQ, sNI, sMI = 5, 6, 7, 20, 21
    sWB, sOB, sRING, sKAP, sOFW, sOFO, sCNT, sKAPO = 22, 23, 24, 25, 26, 27, 28, 29
    vm = VmSim()
    a('s_cmp_ge_u32 s2, 256')
    a('s_cbranch_scc1 K2_end')
    a('s_load_dwordx2 s[32:33], s[0:1], 32')
    a('s_load_dwordx2 s[34:35], s[0:1], 72')
    a('s_load_dwordx2 s[%d:%d], s[0:1], 96' % (sWS, sWS + 1))
    a('s_load_dwordx2 s[%d:%d], s[0:1], 80' % (sOUT, sOUT + 1))
    if P.get('stamp'):
        a('s_memrealtime s[70:71]')
    a('v_lshrrev_b32 v2, 6, v0')
    a('v_and_b32 v1, 63, v0')
    a('v_readfirstlane_b32 s%d, v2' % sW)
    a('s_and_b32 s3, s2, 7')
    a('s_lshr_b32 s4, s2, 3')
    a('s_lshr_b32 s%d, s3, 2' % sBR)
    a('s_and_b32 s%d, s3, 3' % sNQ)
    a('s_and_b32 s%d, s4, 3' % sNI)
    a('s_lshr_b32 s%d, s4, 2' % sMI)
    a('v_lshrrev_b32 v20, 3, v1')
    a('v_and_b32 v21, 7, v1')
    a('v_bfe_u32 v22, v1, 4, 1')
    a('v_lshlrev_b32 v22, 2, v22')
    a('v_xor_b32 v22, v21, v22')
    a('v_lshlrev_b32 v22, 4, v22')
    a('v_lshl_add_u32 v%d, v20, 11, v22' % vWO)
    for i in range(1, 4):
        a('v_add_u32 v%d, %d, v%d' % (vWO + i, i * (8 * 2048 - 1024), vWO))
    a('s_lshr_b32 s3, s%d, 1' % sW)
    a('s_lshl_b32 s3, s3, 18')
    a('v_lshlrev_b32 v23, 4, v1')
    a('v_add_u32 v%d, s3, v23' % vO)
    a('v_xor_b32 v%d, 0x40000, v%d' % (vO + 1, vO))
    a('s_lshl_b32 s%d, s%d, 21' % (sWB, sW))
    a('s_lshl_b32 s3, s%d, 9' % sNQ)
    a('s_add_u32 s%d, s%d, s3' % (sWB, sWB))
    a('s_lshl_b32 s3, s%d, 7' % sNI)
    a('s_add_u32 s%d, s%d, s3' % (sWB, sWB))
    a('s_lshl_b32 s%d, s%d, 22' % (sOB, sBR))
    a('s_lshl_b32 s3, s%d, 19' % sMI)
    a('s_add_u32 s%d, s%d, s3' % (sOB, sOB))
    a('s_lshl_b32 s3, s%d, 16' % sW)
    a('s_add_u32 s%d, s%d, s3' % (sOB, sOB))
    a('s_lshl_b32 s%d, s%d, 14' % (sRING, sW))
    a('s_lshl_b32 s3, s%d, 2' % sMI)
    a('s_lshl_b32 s4, s%d, 3' % sNI)
    a('s_add_u32 s3, s3, s4')
    a('s_and_b32 s%d, s3, %d' % (sKAP, 31 if P.get('rot', 1) else 0))
    a('s_mov_b32 s%d, s%d' % (sKAPO, sKAP))
    a('s_waitcnt lgkmcnt(0)')
    a('s_cmp_eq_u32 s%d, 0' % sBR)
    a('s_cselect_b64 s[%d:%d], s[32:33], s[34:35]' % (sWO, sWO + 1))
    a('s_mov_b32 s%d, %d' % (sWO + 2, 8 << 20))
    a('s_mov_b32 s%d, 0x20000' % (sWO + 3))
    a('s_mov_b32 s%d, %d' % (sWS + 2, 16 << 20))
    a('s_mov_b32 s%d, 0x20000' % (sWS + 3))
    def w_pre(slot):
        return ['s_lshl_b32 s%d, s%d, 16' % (sOFW, sKAP),
                's_add_u32 s%d, s%d, 1' % (sKAP, sKAP),
                's_add_u32 s%d, s%d, s%d' % (sOFW, sOFW, sWB),
                's_and_b32 s%d, s%d, 31' % (sKAP, sKAP),
                's_add_u32 m0, s%d, %d' % (sRING, slot * 4096)]
    def w_dma(i):
        return 'buffer_load_dwordx4 v%d, s[%d:%d], s%d offen offset:%d%s lds' % (vWO + i, sWO, sWO + 3, sOFW, i * 1024, nt)
    def o_pre():
        return ['s_lshl_b32 s%d, s%d, 11' % (sOFO, sKAPO),
                's_add_u32 s%d, s%d, 1' % (sKAPO, sKAPO),
                's_add_u32 s%d, s%d, s%d' % (sOFO, sOFO, sOB),
                's_and_b32 s%d, s%d, 31' % (sKAPO, sKAPO)]
    def o_ld(sl, up, i):
        return 'buffer_load_dwordx4 %s, v%d, s[%d:%d], s%d offen offset:%d%s' % (vr(BF(sl, 2 * up + i), 4), vO + i, sWS, sWS + 3, sOFO, up * 1024, ont)
    for n in range(D):
        for x in w_pre(n): a(x)
        a('s_nop 0')
        for i in range(4): a(w_dma(i))
        vm.issue(('w', n), 4)
        if n < D - 1:
            for x in o_pre(): a(x)
            for up in range(2):
                for i in range(2): a(o_ld(n, up, i))
            vm.issue(('o', n), 4)
    a('s_mov_b32 s%d, %d' % (sOUT + 2, 2 << 20))
    a('s_mov_b32 s%d, 0x20000' % (sOUT + 3))
    a('v_lshrrev_b32 v24, 5, v1')
    a('v_bfe_u32 v25, v1, 2, 2')
    a('v_bfe_u32 v26, v1, 4, 1')
    a('v_and_b32 v27, 1, v1')
    a('v_bfe_u32 v28, v1, 1, 1')
    a('v_lshl_add_u32 v27, v26, 1, v27')
    a('v_bfe_u32 v29, v1, 3, 1')
    a('v_lshlrev_b32 v29, 2, v29')
    a('v_xor_b32 v27, v27, v29')
    a('v_lshlrev_b32 v27, 4, v27')
    a('v_lshl_add_u32 v27, v28, 3, v27')
    a('v_lshl_add_u32 v27, v25, 7, v27')
    a('v_lshl_add_u32 v27, v24, 10, v27')
    a('s_and_b32 s3, s%d, 1' % sW)
    a('s_lshl_b32 s3, s3, 6')
    a('v_xor_b32 v27, s3, v27')
    a('v_add_u32 v%d, s%d, v27' % (vTR, sRING))
    a('v_xor_b32 v%d, 64, v%d' % (vTR + 1, vTR))
    for i in range(4): a('v_mov_b32 v%d, 0' % (vT + i))
    a('s_nop 1')
    for i in range(4):
        a('%s %s, %s, %s, 0' % (MFMA, vr(32 + 16 * i, 16), vr(vT, 4), vr(vT, 4)))
    def reads(n):
        st = n % 2; slot = n % D
        return [['ds_read_b64_tr_b16 %s, v%d offset:%d' % (vr(AF(st, 2 * up + t) + 2 * r2, 2), vTR + t, slot * 4096 + (16 * up + 4 * r2) * 128) for r2 in range(2)]
                for up in range(2) for t in range(2)]
    def mfmas(n):
        st = n % 2; sl = n % D
        return ['%s %s, %s, %s, %s' % (MFMA, vr(ACC(t, i), 16), vr(AF(st, 2 * up + t), 4), vr(BF(sl, 2 * up + i), 4), vr(ACC(t, i), 16))
                for up in range(2) for t in range(2) for i in range(2)]
    N0 = vm.need([('w', 0)])
    NS = []
    for n in range(32):
        need = [('o', n)] + ([('w', n + 1)] if n < 31 else [])
        NS.append(vm.need(need))
        if n + D - 1 <= 31: vm.issue(('o', n + D - 1), 4)
        if n + D <= 31: vm.issue(('w', n + D), 4)
    def step(n, N):
        a('s_waitcnt vmcnt(%d) lgkmcnt(0)' % N)
        fill = [[] for _ in range(8)]
        if n < 31:
            for gi, grp in enumerate(reads(n + 1)): fill[gi] += grp
        if n + D - 1 <= 31:
            for x in o_pre(): a(x)
            k = 0
            for up in range(2):
                for i in range(2):
                    fill[k].append(o_ld((n + D - 1) % D, up, i)); k += 1
        if n + D <= 31:
            pre = w_pre(n % D)
            for k, x in enumerate(pre): fill[min(3, k)].append(x)
            for i in range(4): fill[4 + i].append(w_dma(i))
        interleave(a, mfmas(n), fill)
    a('s_waitcnt vmcnt(%d)' % N0)
    for grp in reads(0):
        for x in grp: a(x)
    nloop = 7
    NL = [min(NS[n + 4 * it] for it in range(nloop)) for n in range(4)]
    a('s_mov_b32 s%d, %d' % (sCNT, nloop))
    a('.p2align 3')
    a('K2_loop:')
    for n in range(4): step(n, NL[n])
    a('s_sub_u32 s%d, s%d, 1' % (sCNT, sCNT))
    a('s_cmp_lg_u32 s%d, 0' % sCNT)
    a('s_cbranch_scc1 K2_loop')
    for n in range(28, 32): step(n, NS[n])
    a('v_add_u32 v%d, s%d, v23' % (vT, sRING))
    for d in range(1, 4):
        a('v_xor_b32 v%d, %d, v%d' % (vT + d, d << 14, vT))
    a('v_and_b32 v24, 31, v1')
    a('v_lshlrev_b32 v24, 12, v24')
    a('v_lshrrev_b32 v25, 5, v1')
    a('v_lshl_add_u32 v24, v25, 4, v24')
    a('s_lshl_b32 s3, s%d, 18' % sMI)
    a('s_lshr_b32 s4, s%d, 1' % sW)
    a('s_lshl_b32 s4, s4, 17')
    a('s_add_u32 s3, s3, s4')
    a('s_lshl_b32 s4, s%d, 11' % sBR)
    a('s_add_u32 s3, s3, s4')
    a('s_lshl_b32 s4, s%d, 9' % sNQ)
    a('s_add_u32 s3, s3, s4')
    a('s_lshl_b32 s4, s%d, 7' % sNI)
    a('s_add_u32 s3, s3, s4')
    a('s_and_b32 s4, s%d, 1' % sW)
    a('s_lshl_b32 s4, s4, 6')
    a('s_add_u32 s3, s3, s4')
    for d in range(1, 4):
        tp, ip = d & 1, d >> 1
        for k in range(4):
            a('ds_write_b128 v%d, %s offset:%d' % (vT, vr(ACC(tp, ip) + 4 * k, 4), d * 4096 + k * 1024))
    a('s_waitcnt lgkmcnt(0)')
    a('s_barrier')
    for d in range(1, 4):
        for k in range(4):
            a('ds_read_b128 %s, v%d offset:%d' % (vr(96 + 16 * (d - 1) + 4 * k, 4), vT + d, d * 4096 + k * 1024))
    for d in range(1, 4):
        a('s_waitcnt lgkmcnt(%d)' % (12 - 4 * d))
        for r in range(16):
            a('v_add_f32 v%d, v%d, v%d' % (32 + r, 32 + r, 96 + 16 * (d - 1) + r))
    for r in range(8):
        a('v_cvt_pk_bf16_f32 v%d, v%d, v%d' % (48 + r, 32 + 2 * r, 33 + 2 * r))
    a('buffer_store_dwordx4 v[48:51], v24, s[%d:%d], s3 offen' % (sOUT, sOUT + 3))
    a('buffer_store_dwordx4 v[52:55], v24, s[%d:%d], s3 offen offset:32' % (sOUT, sOUT + 3))
    if P.get('stamp'):
        a('s_waitcnt vmcnt(0)')
        a('s_memrealtime s[72:73]')
        a('s_lshl_b32 s3, s2, 2')
        a('s_add_u32 s3, s3, s%d' % sW)
        a('s_lshl_b32 s3, s3, 4')
        a('s_add_u32 s3, s3, %d' % ((12 << 20) + 16384))
        a('s_waitcnt lgkmcnt(0)')
        for i in range(4): a('v_mov_b32 v%d, s%d' % (60 + i, 70 + i))
        a('v_mov_b32 v64, 0')
        a('buffer_store_dwordx4 v[60:63], v64, s[%d:%d], s3 offen' % (sWS, sWS + 3))
    a('K2_end:')
    a('s_endpgm')
    errs = hazard.check(unroll_for_check(a.lines, ['K2_loop']), 'K2')
    for e in errs: print('HAZARD', e, file=sys.stderr)
    return kernel_text('oproj_kernel', a.text(), 192, accum=192)

def build(P):
    return file_text([('qa_kernel', 256, 256, 163840), ('oproj_kernel', 256, 256, P.get('k2lds', 65536))], [gen_k1(P), gen_k2(P)])

if __name__ == '__main__':
    P = {}
    out = sys.argv[1]
    for kv in sys.argv[2:]:
        k, v = kv.split('=')
        P[k] = int(v) if v.lstrip('-').isdigit() else (' ' + v.replace('+', ' ') if v else '')
    open(out, 'w').write(build(P))
```
